```python
import torch

def _softmax(x, axis=-1):
    return torch.softmax(x, dim=axis)
def _gelu(x):
    return torch.nn.functional.gelu(x, approximate="tanh")
def _silu(x):
    return torch.nn.functional.silu(x)
def _sigmoid(x):
    return torch.sigmoid(x)
def _layernorm(x, axis=-1, eps=1e-5):
    m = x.mean(dim=axis, keepdim=True)
    v = x.var(dim=axis, keepdim=True, unbiased=False)
    return (x - m) / torch.sqrt(v + eps)
def _scatter_add(tgt, idx, src, axis=0):
    return tgt.clone().index_add_(axis, idx, src)
def _segment_sum(src, seg, n):
    out = torch.zeros((n,) + src.shape[1:], dtype=src.dtype)
    return out.index_add_(0, seg, src)
def _pad(x, pw):
    flat = tuple(v for pair in reversed(pw) for v in pair)
    return torch.nn.functional.pad(x, flat)

kernel_name = 'interleave_layers__ssm_conv_s4__geglu_ffn__prompt'

def setup_inputs():

    _w = (lambda a: (lambda t: t.to(torch.bfloat16) if t.is_floating_point() else t)(torch.as_tensor(a)))
    def _A_setup():
        B, L, D, N = 1, 2048, 512, 128
        A_re = -(lambda _x: torch.exp(torch.as_tensor(_x)))((lambda *s: torch.randn(*s, dtype=torch.bfloat16) * 1.6)(D, N))
        A_im = torch.pi * (lambda *s: torch.randn(*s, dtype=torch.bfloat16) * 0.2)(D, N)
        B_re = (lambda *s: torch.randn(*s, dtype=torch.bfloat16) * 0.2)(D, N)
        B_im = (lambda *s: torch.randn(*s, dtype=torch.bfloat16) * 0.2)(D, N)
        C_re = (lambda *s: torch.randn(*s, dtype=torch.bfloat16) * 0.2)(D, N)
        C_im = (lambda *s: torch.randn(*s, dtype=torch.bfloat16) * 0.2)(D, N)
        log_dt = (lambda *s: torch.randn(*s, dtype=torch.bfloat16) * 0.2)(D) * 0.5 - 4.0
        Dskip = (lambda *s: torch.randn(*s, dtype=torch.bfloat16) * 0.2)(D)
        return {
            "u": _w((lambda *s: torch.randn(*s, dtype=torch.bfloat16) * 0.05)(B, L, D)),
            "A_re": _w(A_re),
            "A_im": _w(A_im),
            "B_re": _w(B_re),
            "B_im": _w(B_im),
            "C_re": _w(C_re),
            "C_im": _w(C_im),
            "log_dt": _w(log_dt),
            "Dskip": _w(Dskip),
        }
    _A_in = _A_setup()

    def _B_setup():
        B, S, D, F = 1, 2048, 512, 1792
        return {
            "x": _w((lambda *s: torch.randn(*s, dtype=torch.bfloat16) * 0.05)(B, S, D)),
            "w_gate": _w((lambda *s: torch.randn(*s, dtype=torch.bfloat16) * 0.05)(D, F)),
            "w_up": _w((lambda *s: torch.randn(*s, dtype=torch.bfloat16) * 0.05)(D, F)),
            "w_down": _w((lambda *s: torch.randn(*s, dtype=torch.bfloat16) * 0.05)(F, D)),
        }
    _B_in = _B_setup()

    return {
        "A_u": _A_in["u"],
        "A_A_re": _A_in["A_re"],
        "A_A_im": _A_in["A_im"],
        "A_B_re": _A_in["B_re"],
        "A_B_im": _A_in["B_im"],
        "A_C_re": _A_in["C_re"],
        "A_C_im": _A_in["C_im"],
        "A_log_dt": _A_in["log_dt"],
        "A_Dskip": _A_in["Dskip"],
        "B_x": _B_in["x"],
        "B_w_gate": _B_in["w_gate"],
        "B_w_up": _B_in["w_up"],
        "B_w_down": _B_in["w_down"],
    }

def reference(A_u, A_A_re, A_A_im, A_B_re, A_B_im, A_C_re, A_C_im, A_log_dt, A_Dskip, B_x, B_w_gate, B_w_up, B_w_down):
    def _A_ref(u, A_re, A_im, B_re, B_im, C_re, C_im, log_dt, Dskip):
        Bsz, L, D = u.shape
        dt = torch.exp(log_dt)[:, None]
        A = A_re + 1j * A_im
        Bc = B_re + 1j * B_im
        Cc = C_re + 1j * C_im
        logdA = dt * A
        dB = dt * Bc
        l = (lambda x, dt: x.to(dt))(torch.arange(L), A_re.dtype)
        P = torch.exp(logdA[:, :, None] * l[None, None, :])
        K = torch.einsum("dn,dnl,dn->dl", Cc, P, dB).real
        L2 = 2 * L
        Kp = _pad(K, ((0, 0), (0, L)))
        up = (lambda x, *d: x.permute(*d))(u, 0, 2, 1)
        up = _pad(up, ((0, 0), (0, 0), (0, L)))
        Kf = (lambda x, axes=(-2,-1): torch.fft.rfft2(x.float(), dim=axes))(Kp[:, None, :], axes=(-2, -1))
        Uf = (lambda x, axes=(-2,-1): torch.fft.rfft2(x.float(), dim=axes))(up[:, :, None, :], axes=(-2, -1))
        Yf = Uf * Kf[None, :, :, :]
        y = (lambda x, s, axes=(-2,-1): torch.fft.irfft2(x, s=s, dim=axes).to(torch.bfloat16))(Yf, (1, L2), axes=(-2, -1))[:, :, 0, :L]
        y = (lambda x, *d: x.permute(*d))(y, 0, 2, 1) + u * Dskip[None, None, :]
        return y

    def _B_ref(x, w_gate, w_up, w_down):
        return (_gelu(x @ w_gate) * (x @ w_up)) @ w_down

    x = A_u
    x = x + _A_ref(_layernorm(x, axis=-1), A_A_re, A_A_im, A_B_re, A_B_im, A_C_re, A_C_im, A_log_dt, A_Dskip)
    x = x + _B_ref(_layernorm(x, axis=-1), B_w_gate, B_w_up, B_w_down)
    x = x + _A_ref(_layernorm(x, axis=-1), A_A_re, A_A_im, A_B_re, A_B_im, A_C_re, A_C_im, A_log_dt, A_Dskip)
    x = x + _B_ref(_layernorm(x, axis=-1), B_w_gate, B_w_up, B_w_down)
    return x
```

```python
import struct, sys, math

NAME = "interleave_layers__ssm_conv_s4__geglu_ffn__prompt"
L, D, F, NM = 2048, 512, 1792, 128

KA_U, KA_ARE, KA_AIM, KA_BRE, KA_BIM, KA_CRE, KA_CIM, KA_LDT, KA_DSK = 0, 8, 16, 24, 32, 40, 48, 56, 64
KA_WG, KA_WU, KA_WD, KA_OUT, KA_DBG, KA_WS = 80, 88, 96, 104, 112, 120

MB = 1 << 20
WS_XT0, WS_XT1, WS_XT2, WS_XT3 = 0, 2 * MB, 4 * MB, 6 * MB
WS_HT = 8 * MB
WS_KP = 16 * MB
KPITCH = 4160
WS_ST0 = 20 * MB
WS_ST2 = 20 * MB + 65536
WS_CW = 20 * MB + 131072

def f32bits(x):
    return struct.unpack("<I", struct.pack("<f", x))[0]
def flit(x):
    return "0x%08x" % f32bits(x)

def v(i): return "v%d" % i
def vr(i, n): return "v[%d:%d]" % (i, i + n - 1)
def s(i): return "s%d" % i
def sr(i, n): return "s[%d:%d]" % (i, i + n - 1)

class Kern:
    def __init__(self, name):
        self.name = name
        self.lines = []
        self.nlab = 0
    def e(self, txt):
        self.lines.append("    " + txt)
    def c(self, txt):
        self.lines.append("    ; " + txt)
    def label(self, n):
        self.lines.append(n + ":")
    def newlabel(self, base="L"):
        self.nlab += 1
        return "%s_%s_%d" % (self.name, base, self.nlab)
    def nop(self, n):
        while n > 0:
            k = min(n, 16)
            self.e("s_nop %d" % (k - 1))
            n -= k
    def srd(self, sd, sptr, off, size):
        self.e("s_add_u32 %s, %s, 0x%x" % (s(sd), s(sptr), off & 0xffffffff))
        self.e("s_addc_u32 %s, %s, 0" % (s(sd + 1), s(sptr + 1)))
        self.e("s_and_b32 %s, %s, 0xffff" % (s(sd + 1), s(sd + 1)))
        self.e("s_mov_b32 %s, 0x%x" % (s(sd + 2), size))
        self.e("s_mov_b32 %s, 0x00020000" % s(sd + 3))
    def wave_sum(self, r):
        for sh in (1, 2, 4, 8):
            self.nop(2)
            self.e("v_add_f32_dpp %s, %s, %s row_shr:%d row_mask:0xf bank_mask:0xf bound_ctrl:0" % (v(r), v(r), v(r), sh))
        self.nop(2)
        self.e("v_add_f32_dpp %s, %s, %s row_bcast:15 row_mask:0xa bank_mask:0xf" % (v(r), v(r), v(r)))
        self.nop(2)
        self.e("v_add_f32_dpp %s, %s, %s row_bcast:31 row_mask:0xc bank_mask:0xf" % (v(r), v(r), v(r)))
    def text(self):
        return "\n".join(self.lines) + "\n"

def kernel_header(name):
    return ".globl %s\n.p2align 8\n.type %s,@function\n%s:\n" % (name, name, name)

def kernel_desc(name, vgprs, sgprs=96):
    vg = (vgprs + 3) // 4 * 4
    return """.p2align 6
.amdhsa_kernel %s
  .amdhsa_next_free_vgpr %d
  .amdhsa_next_free_sgpr %d
  .amdhsa_accum_offset %d
  .amdhsa_group_segment_fixed_size 0
  .amdhsa_kernarg_size 128
  .amdhsa_user_sgpr_count 2
  .amdhsa_user_sgpr_kernarg_segment_ptr 1
  .amdhsa_system_sgpr_workgroup_id_x 1
.end_amdhsa_kernel
""" % (name, vg, sgprs, vg)

PREP_TR, PREP_ST, PREP_CS, PREP_Z, PREP_KG = 0, 256, 320, 348, 349
PREP_NWG = PREP_KG + 512
KG_SEG = 33280
KG_TAB = 4 * KG_SEG
PREP_LDS = KG_TAB + 4096

def gen_prep():
    k = Kern("prep")
    k.e("s_cmp_ge_u32 s2, %d" % PREP_NWG)
    k.e("s_cbranch_scc1 prep_exit")
    k.e("s_load_dwordx2 s[6:7], s[0:1], %d" % KA_WS)
    k.e("s_cmp_ge_u32 s2, %d" % PREP_KG)
    k.e("s_cbranch_scc1 prep_kgen")
    k.e("s_cmp_ge_u32 s2, %d" % PREP_Z)
    k.e("s_cbranch_scc1 prep_zero")
    k.e("s_cmp_ge_u32 s2, %d" % PREP_CS)
    k.e("s_cbranch_scc1 prep_colsum")
    k.e("s_cmp_ge_u32 s2, %d" % PREP_ST)
    k.e("s_cbranch_scc1 prep_stats")
    k.c("transpose 64x64 tile")
    k.e("s_load_dwordx2 s[4:5], s[0:1], %d" % KA_U)
    k.e("s_waitcnt lgkmcnt(0)")
    k.srd(8, 4, 0, L * D * 2)
    k.srd(12, 6, WS_XT0, L * D * 2)
    k.e("s_lshr_b32 s16, s2, 3")
    k.e("s_lshl_b32 s16, s16, 6")
    k.e("s_and_b32 s17, s2, 7")
    k.e("s_lshl_b32 s17, s17, 6")
    k.e("v_and_b32 v1, 63, v0")
    k.e("v_lshrrev_b32 v2, 6, v0")
    k.e("v_lshlrev_b32 v3, 4, v2")
    k.e("v_add_u32 v3, s16, v3")
    k.e("v_add_u32 v4, s17, v1")
    k.e("v_lshlrev_b32 v5, 10, v3")
    k.e("v_lshl_add_u32 v5, v4, 1, v5")
    k.e("s_movk_i32 s18, 0x1000")
    k.e("s_movk_i32 s19, 0x2000")
    k.e("s_movk_i32 s20, 0x3000")
    so = ["0", "s18", "s19", "s20"]
    for i in range(16):
        k.e("buffer_load_ushort %s, v5, s[8:11], %s offen offset:%d" % (v(10 + i), so[i >> 2], (i & 3) * 1024))
    k.e("v_lshlrev_b32 v6, 12, v4")
    k.e("v_lshl_add_u32 v6, v3, 1, v6")
    k.e("s_waitcnt vmcnt(0)")
    for i in range(8):
        k.e("v_lshl_or_b32 %s, %s, 16, %s" % (v(30 + i), v(10 + 2 * i + 1), v(10 + 2 * i)))
    k.e("buffer_store_dwordx4 v[30:33], v6, s[12:15], 0 offen")
    k.e("buffer_store_dwordx4 v[34:37], v6, s[12:15], 0 offen offset:16")
    k.e("s_endpgm")
    k.label("prep_stats")
    k.e("s_load_dwordx2 s[4:5], s[0:1], %d" % KA_U)
    k.e("s_waitcnt lgkmcnt(0)")
    k.srd(8, 4, 0, L * D * 2)
    k.srd(12, 6, WS_ST0, L * 8)
    k.e("s_sub_u32 s16, s2, %d" % PREP_ST)
    k.e("s_lshl_b32 s16, s16, 5")
    k.e("v_lshrrev_b32 v1, 6, v0")
    k.e("v_lshlrev_b32 v1, 3, v1")
    k.e("v_add_u32 v1, s16, v1")
    k.e("v_and_b32 v2, 63, v0")
    k.e("v_lshlrev_b32 v3, 10, v1")
    k.e("v_lshl_add_u32 v3, v2, 4, v3")
    k.e("s_movk_i32 s18, 0x1000")
    for i in range(8):
        k.e("buffer_load_dwordx4 %s, v3, s[8:11], %s offen offset:%d" % (vr(8 + 4 * i, 4), "0" if i < 4 else "s18", (i & 3) * 1024))
    k.e("v_mov_b32 v4, 0x3f803f80")
    for i in range(8):
        k.e("v_mov_b32 %s, 0" % v(40 + i))
        k.e("v_mov_b32 %s, 0" % v(48 + i))
    for i in range(8):
        k.e("s_waitcnt vmcnt(%d)" % (7 - i))
        for j in range(4):
            k.e("v_dot2_f32_bf16 %s, %s, v4, %s" % (v(40 + i), v(8 + 4 * i + j), v(40 + i)))
        for j in range(4):
            k.e("v_dot2_f32_bf16 %s, %s, %s, %s" % (v(48 + i), v(8 + 4 * i + j), v(8 + 4 * i + j), v(48 + i)))
    k.nop(4)
    for i in range(8):
        k.wave_sum(40 + i)
        k.wave_sum(48 + i)
    k.e("v_lshlrev_b32 v5, 3, v1")
    k.e("v_cmp_eq_u32 vcc, 63, v2")
    k.e("s_and_saveexec_b64 s[20:21], vcc")
    for i in range(8):
        k.e("v_mov_b32 v6, %s" % v(40 + i))
        k.e("v_mov_b32 v7, %s" % v(48 + i))
        k.e("buffer_store_dwordx2 v[6:7], v5, s[12:15], 0 offen offset:%d" % (8 * i))
        k.nop(1)
    k.e("s_endpgm")
    k.label("prep_colsum")
    k.e("s_sub_u32 s16, s2, %d" % PREP_CS)
    k.e("s_cmp_ge_u32 s16, 14")
    k.e("s_movk_i32 s17, %d" % KA_WG)
    k.e("s_cselect_b32 s17, %d, s17" % KA_WU)
    k.e("s_cselect_b32 s22, 14, 0")
    k.e("s_sub_u32 s16, s16, s22")
    k.e("s_load_dwordx2 s[4:5], s[0:1], s17")
    k.e("s_waitcnt lgkmcnt(0)")
    k.srd(8, 4, 0, D * F * 2)
    k.e("s_lshl_b32 s23, s22, 9")
    k.e("s_add_u32 s23, s23, %d" % WS_CW)
    k.e("s_add_u32 s12, s6, s23")
    k.e("s_addc_u32 s13, s7, 0")
    k.e("s_and_b32 s13, s13, 0xffff")
    k.e("s_mov_b32 s14, %d" % (F * 4))
    k.e("s_mov_b32 s15, 0x00020000")
    k.e("v_and_b32 v1, 15, v0")
    k.e("v_lshrrev_b32 v2, 4, v0")
    k.e("s_lshl_b32 s18, s16, 8")
    k.e("v_lshlrev_b32 v3, 4, v1")
    k.e("v_add_u32 v3, s18, v3")
    k.e("s_mov_b32 s19, %d" % (32 * F * 2))
    k.e("v_mul_lo_u32 v4, v2, s19")
    k.e("v_add_u32 v3, v3, v4")
    for i in range(8):
        k.e("v_mov_b32 %s, 0" % v(100 + i))
    for b in range(2):
        for i in range(16):
            r = b * 16 + i
            k.e("s_mov_b32 %s, %d" % (s(24 + i), r * F * 2))
        for i in range(16):
            k.e("buffer_load_dwordx4 %s, v3, s[8:11], %s offen" % (vr(8 + 4 * i, 4), s(24 + i)))
        for i in range(16):
            k.e("s_waitcnt vmcnt(%d)" % (15 - i))
            for j in range(4):
                k.e("v_lshlrev_b32 v5, 16, %s" % v(8 + 4 * i + j))
                k.e("v_and_b32 v6, 0xffff0000, %s" % v(8 + 4 * i + j))
                k.e("v_add_f32 %s, %s, v5" % (v(100 + 2 * j), v(100 + 2 * j)))
                k.e("v_add_f32 %s, %s, v6" % (v(100 + 2 * j + 1), v(100 + 2 * j + 1)))
    k.e("v_lshlrev_b32 v7, 9, v2")
    k.e("v_lshl_add_u32 v7, v1, 5, v7")
    k.e("ds_write_b128 v7, v[100:103]")
    k.e("ds_write_b128 v7, v[104:107] offset:16")
    k.e("s_waitcnt lgkmcnt(0)")
    k.e("s_barrier")
    k.e("v_cmp_gt_u32 vcc, 128, v0")
    k.e("s_and_saveexec_b64 s[20:21], vcc")
    k.e("s_cbranch_execz prep_exit")
    k.e("v_lshlrev_b32 v7, 2, v0")
    for i in range(16):
        k.e("ds_read_b32 %s, v7 offset:%d" % (v(8 + i), 512 * i))
    k.e("s_waitcnt lgkmcnt(0)")
    for i in range(1, 16):
        k.e("v_add_f32 v8, v8, %s" % v(8 + i))
    k.e("s_lshl_b32 s18, s16, 9")
    k.e("v_add_u32 v7, s18, v7")
    k.e("buffer_store_dword v8, v7, s[12:15], 0 offen")
    k.e("s_endpgm")
    k.label("prep_zero")
    k.e("s_waitcnt lgkmcnt(0)")
    k.srd(12, 6, WS_ST2, L * 8)
    k.e("v_lshlrev_b32 v1, 6, v0")
    for i in range(4):
        k.e("v_mov_b32 %s, 0" % v(4 + i))
    for i in range(4):
        k.e("buffer_store_dwordx4 v[4:7], v1, s[12:15], 0 offen offset:%d" % (16 * i))
    k.e("s_endpgm")
    k.label("prep_kgen")
    gen_kgen(k)
    k.label("prep_exit")
    k.e("s_endpgm")
    return k

def gen_kgen(k):
    k.c("K generation: one channel per workgroup")
    k.e("s_sub_u32 s16, s2, %d" % PREP_KG)
    for i, off in enumerate((KA_ARE, KA_AIM, KA_BRE, KA_BIM, KA_CRE, KA_CIM, KA_LDT)):
        k.e("s_load_dwordx2 %s, s[0:1], %d" % (sr(24 + 2 * i, 2), off))
    k.e("s_waitcnt lgkmcnt(0)")
    for i in range(6):
        k.srd(40 + 4 * i, 24 + 2 * i, 0, D * NM * 2)
    k.srd(64, 36, 0, D * 2)
    k.srd(68, 6, WS_KP, D * KPITCH)
    k.e("v_and_b32 v1, 127, v0")
    k.e("v_lshrrev_b32 v2, 7, v0")
    k.e("s_lshl_b32 s17, s16, 8")
    k.e("v_lshl_add_u32 v3, v1, 1, s17")
    for i in range(6):
        k.e("buffer_load_ushort %s, v3, %s, 0 offen" % (v(10 + i), sr(40 + 4 * i, 4)))
    k.e("s_lshl_b32 s18, s16, 1")
    k.e("v_mov_b32 v4, s18")
    k.e("buffer_load_ushort v16, v4, s[64:67], 0 offen")
    k.e("s_waitcnt vmcnt(0)")
    for i in range(7):
        k.e("v_lshlrev_b32 %s, 16, %s" % (v(10 + i), v(10 + i)))
    k.e("v_mul_f32 v17, %s, v16" % flit(1.4426950408889634))
    k.e("v_exp_f32 v17, v17")
    k.nop(1)
    k.e("v_cvt_pk_bf16_f32 v17, v17, v17")
    k.nop(1)
    k.e("v_lshlrev_b32 v17, 16, v17")
    k.e("v_mul_f32 v18, v17, v10")
    k.e("v_mul_f32 v19, v17, v11")
    k.e("v_mul_f32 v20, v17, v12")
    k.e("v_mul_f32 v21, v17, v13")
    k.e("v_mul_f32 v22, v14, v20")
    k.e("v_fma_f32 v22, -v15, v21, v22")
    k.e("v_mul_f32 v23, v14, v21")
    k.e("v_fma_f32 v23, v15, v20, v23")
    k.e("v_mul_f32 v24, %s, v18" % flit(1.4426950408889634))
    k.e("v_mul_f32 v25, %s, v19" % flit(1.0 / (2 * math.pi)))
    RA, RB = 24, 25
    def cexp(x, dre, dim, t1=26, t2=27):
        k.e("v_mul_f32 %s, %s, %s" % (v(t1), flit(float(x)), v(RA)))
        k.e("v_exp_f32 %s, %s" % (v(t1), v(t1)))
        k.e("v_mul_f32 %s, %s, %s" % (v(t2), flit(float(x)), v(RB)))
        k.e("v_fract_f32 %s, %s" % (v(t2), v(t2)))
        k.e("v_cos_f32 %s, %s" % (v(dre), v(t2)))
        k.e("v_sin_f32 %s, %s" % (v(dim), v(t2)))
        k.nop(1)
        k.e("v_mul_f32 %s, %s, %s" % (v(dre), v(t1), v(dre)))
        k.e("v_mul_f32 %s, %s, %s" % (v(dim), v(t1), v(dim)))
    def cmul(dre, dim, are, aim, bre, bim, t=28):
        k.e("v_mul_f32 %s, %s, %s" % (v(t), v(are), v(bre)))
        k.e("v_fma_f32 %s, -%s, %s, %s" % (v(t), v(aim), v(bim), v(t)))
        k.e("v_mul_f32 %s, %s, %s" % (v(dim), v(aim), v(bre)))
        k.e("v_fma_f32 %s, %s, %s, %s" % (v(dim), v(are), v(bim), v(dim)))
        k.e("v_mov_b32 %s, %s" % (v(dre), v(t)))
    segs = [(1, 0, 16), (2, 256, 8), (4, 512, 8), (8, 1024, 9)]
    k.e("v_lshlrev_b32 v5, 3, v1")
    k.e("v_cmp_eq_u32 vcc, 0, v2")
    k.e("s_cbranch_vccz kgen_beta")
    for si, (sg, base, nh) in enumerate(segs):
        cexp(base, 30, 31)
        cmul(30, 31, 30, 31, 22, 23)
        cexp(16 * sg, 32, 33)
        for h in range(nh):
            k.e("v_mov_b32 v34, v30")
            k.e("v_sub_f32 v35, 0, v31")
            k.e("ds_write_b64 v5, v[34:35] offset:%d" % (h * 1040))
            if h + 1 < nh:
                cmul(30, 31, 30, 31, 32, 33)
        k.e("v_add_u32 v5, %d, v5" % KG_SEG)
    k.e("s_branch kgen_p2")
    k.label("kgen_beta")
    for si, (sg, base, nh) in enumerate(segs):
        cexp(sg, 32, 33)
        k.e("v_mov_b32 v30, 1.0")
        k.e("v_mov_b32 v31, 0")
        for o in range(16):
            k.e("v_mov_b32 v34, v30")
            k.e("v_mov_b32 v35, v31")
            k.e("ds_write_b64 v5, v[34:35] offset:%d" % (16640 + o * 1040))
            if o + 1 < 16:
                cmul(30, 31, 30, 31, 32, 33)
        k.e("v_add_u32 v5, %d, v5" % KG_SEG)
    k.label("kgen_p2")
    k.e("s_waitcnt lgkmcnt(0)")
    k.e("s_barrier")
    k.e("v_lshrrev_b32 v6, 6, v0")
    k.e("v_and_b32 v7, 63, v0")
    k.e("v_and_b32 v8, 15, v7")
    k.e("v_lshrrev_b32 v9, 4, v7")
    k.e("s_mov_b32 s19, %d" % KG_SEG)
    k.e("v_mul_lo_u32 v36, v6, s19")
    k.e("s_movk_i32 s20, 1040")
    k.e("v_mul_lo_u32 v37, v8, s20")
    k.e("v_add_u32 v36, v36, v37")
    k.e("v_lshl_add_u32 v36, v9, 2, v36")
    k.e("v_add_u32 v37, 16640, v36")
    for i in range(4):
        k.e("v_mov_b32 %s, 0" % v(40 + i))
    NB_ = 8
    def rd(t):
        k.e("ds_read_b32 %s, v36 offset:%d" % (v(50 + (t % 16)), 16 * t))
        k.e("ds_read_b32 %s, v37 offset:%d" % (v(70 + (t % 16)), 16 * t))
    for t in range(8):
        rd(t)
    for b in range(16):
        if b + 2 < 16:
            for t in range(4 * (b + 2), 4 * (b + 3)):
                rd(t)
            k.e("s_waitcnt lgkmcnt(15)")
        else:
            k.e("s_waitcnt lgkmcnt(%d)" % (8 if b + 2 == 16 else 0))
        for t in range(4 * b, 4 * b + 4):
            k.e("v_mfma_f32_16x16x4_f32 v[40:43], %s, %s, v[40:43]" % (v(50 + (t % 16)), v(70 + (t % 16))))
    k.nop(12)
    k.e("v_lshlrev_b32 v38, 10, v6")
    k.e("v_lshl_add_u32 v38, v9, 8, v38")
    k.e("v_lshl_add_u32 v38, v8, 2, v38")
    k.e("v_add_u32 v38, %d, v38" % KG_TAB)
    for r in range(4):
        k.e("ds_write_b32 v38, %s offset:%d" % (v(40 + r), 64 * r))
    k.e("s_waitcnt lgkmcnt(0)")
    k.e("s_barrier")
    k.e("v_lshlrev_b32 v6, 3, v0")
    for i in range(8):
        k.e("v_add_u32 v7, %d, v6" % i)
        k.e("v_cvt_f32_u32 v7, v7")
        k.nop(1)
        k.e("v_cvt_pk_bf16_f32 v7, v7, v7")
        k.nop(1)
        k.e("v_lshlrev_b32 v7, 16, v7")
        k.e("v_lshrrev_b32 v8, 23, v7")
        k.e("v_subrev_u32 v8, 134, v8")
        k.e("v_max_i32 v8, 0, v8")
        k.e("v_min_i32 v8, 3, v8")
        k.e("v_cvt_u32_f32 v9, v7")
        k.nop(1)
        k.e("v_lshrrev_b32 v9, v8, v9")
        k.e("v_lshl_add_u32 v9, v8, 8, v9")
        k.e("v_min_i32 v8, 1, v8")
        k.e("v_lshlrev_b32 v8, 7, v8")
        k.e("v_sub_u32 v9, v9, v8")
        k.e("v_lshlrev_b32 v9, 2, v9")
        k.e("v_add_u32 v9, %d, v9" % KG_TAB)
        k.e("ds_read_b32 %s, v9" % v(40 + i))
    k.e("s_waitcnt lgkmcnt(0)")
    for i in range(4):
        k.e("v_cvt_pk_bf16_f32 %s, %s, %s" % (v(50 + i), v(40 + 2 * i), v(40 + 2 * i + 1)))
    k.e("s_mul_i32 s21, s16, %d" % KPITCH)
    k.e("v_lshlrev_b32 v6, 4, v0")
    k.e("v_add_u32 v6, s21, v6")
    k.e("buffer_store_dwordx4 v[50:53], v6, s[68:71], 0 offen offset:64")
    for i in range(4):
        k.e("v_mov_b32 %s, 0" % v(54 + i))
    k.e("v_cmp_gt_u32 vcc, 4, v0")
    k.e("s_and_saveexec_b64 s[22:23], vcc")
    k.e("s_cbranch_execz prep_exit")
    k.e("buffer_store_dwordx4 v[54:57], v6, s[68:71], 0 offen")
    k.e("s_branch prep_exit")


CV_KC = 4160
CV_U = 4 * CV_KC
CV_CH = CV_U + 2288 * 2
CONV_LDS = 2 * CV_CH

def ln_params(k, vs, vq, vm, vrs, t0):
    k.e("v_mul_f32 %s, %s, %s" % (v(t0), flit(1.0 / D), v(vs)))
    k.e("v_mul_f32 %s, %s, %s" % (v(t0 + 1), flit(1.0 / D), v(vq)))
    k.e("v_fma_f32 %s, -%s, %s, %s" % (v(t0 + 1), v(t0), v(t0), v(t0 + 1)))
    k.e("v_max_f32 %s, 0, %s" % (v(t0 + 1), v(t0 + 1)))
    k.e("v_cvt_pk_bf16_f32 %s, %s, %s" % (v(t0), v(t0), v(t0 + 1)))
    k.nop(1)
    k.e("v_lshlrev_b32 %s, 16, %s" % (v(vm), v(t0)))
    k.e("v_and_b32 %s, 0xffff0000, %s" % (v(t0 + 1), v(t0)))
    k.e("v_add_f32 %s, %s, %s" % (v(t0 + 1), flit(1e-5), v(t0 + 1)))
    k.e("v_cvt_pk_bf16_f32 %s, %s, %s" % (v(t0 + 1), v(t0 + 1), v(t0 + 1)))
    k.nop(1)
    k.e("v_lshlrev_b32 %s, 16, %s" % (v(t0 + 1), v(t0 + 1)))
    k.e("v_sqrt_f32 %s, %s" % (v(t0 + 1), v(t0 + 1)))
    k.nop(1)
    k.e("v_cvt_pk_bf16_f32 %s, %s, %s" % (v(t0 + 1), v(t0 + 1), v(t0 + 1)))
    k.nop(1)
    k.e("v_lshlrev_b32 %s, 16, %s" % (v(t0 + 1), v(t0 + 1)))
    k.e("v_rcp_f32 %s, %s" % (v(vrs), v(t0 + 1)))
    k.nop(1)

def gen_conv(name, xin, stin, xout):
    k = Kern(name)
    ex = name + "_exit"
    k.e("s_cmp_ge_u32 s2, 256")
    k.e("s_cbranch_scc1 " + ex)
    k.e("s_load_dwordx2 s[4:5], s[0:1], %d" % KA_WS)
    k.e("s_load_dwordx2 s[6:7], s[0:1], %d" % KA_DSK)
    k.e("v_readfirstlane_b32 s30, v0")
    k.e("s_lshr_b32 s30, s30, 6")
    k.e("s_lshr_b32 s31, s30, 1")
    k.e("s_and_b32 s32, s30, 1")
    k.e("s_lshl_b32 s33, s2, 1")
    k.e("s_add_u32 s34, s33, s31")
    k.e("s_waitcnt lgkmcnt(0)")
    k.srd(8, 4, xin, D * L * 2)
    k.srd(12, 4, stin, L * 8)
    k.srd(16, 4, WS_KP, D * KPITCH)
    k.srd(20, 4, xout, D * L * 2)
    k.e("s_lshl_b32 s37, s34, 1")
    k.e("s_and_b32 s38, s37, 0xfffffffc")
    k.e("s_load_dword s39, s[6:7], s38")
    k.e("v_and_b32 v1, 63, v0")
    k.e("v_lshlrev_b32 v2, 4, v1")
    k.e("s_mul_i32 s40, s34, %d" % KPITCH)
    k.e("s_mul_i32 s41, s31, %d" % CV_CH)
    k.e("s_lshl_b32 s42, s32, 1")
    for rr in range(2):
        k.e("s_add_u32 s43, s42, %d" % rr)
        k.e("s_mul_i32 s44, s43, %d" % CV_KC)
        k.e("s_add_u32 s44, s44, s41")
        k.e("s_lshl_b32 s45, s43, 1")
        k.e("s_add_u32 s45, s45, %d" % 34)
        k.e("s_add_u32 s45, s45, s40")
        k.e("s_mov_b32 m0, s44")
        k.nop(1)
        for i in range(4):
            k.e("buffer_load_dwordx4 v2, s[16:19], s45 offen offset:%d lds" % (1024 * i))
        k.e("s_add_u32 s44, s44, 4096")
        k.e("s_add_u32 s45, s45, 4096")
        k.e("s_mov_b32 m0, s44")
        k.e("s_mov_b64 exec, 3")
        k.e("buffer_load_dwordx4 v2, s[16:19], s45 offen lds")
        k.e("s_mov_b64 exec, -1")
    k.e("v_lshlrev_b32 v3, 4, v0")
    k.e("s_lshl_b32 s35, s33, 12")
    k.e("s_add_u32 s36, s35, 4096")
    k.e("buffer_load_dwordx4 v[8:11], v3, s[8:11], s35 offen")
    k.e("buffer_load_dwordx4 v[12:15], v3, s[8:11], s36 offen")
    k.e("v_lshlrev_b32 v4, 6, v0")
    for j in range(4):
        k.e("buffer_load_dwordx4 %s, v4, s[12:15], 0 offen offset:%d" % (vr(16 + 4 * j, 4), 16 * j))
    k.e("v_and_b32 v5, 15, v1")
    k.e("v_lshrrev_b32 v6, 4, v1")
    k.e("v_lshlrev_b32 v7, 5, v5")
    k.e("v_lshl_add_u32 v7, v6, 3, v7")
    k.e("s_lshl_b32 s46, s34, 12")
    for g in range(8):
        k.e("buffer_load_dwordx2 %s, v7, s[8:11], s46 offen offset:%d" % (vr(32 + 2 * g, 2), 512 * g))
    k.e("s_waitcnt vmcnt(8)")
    for i in range(8):
        ln_params(k, 16 + 2 * i, 17 + 2 * i, 48 + i, 56 + i, 64)
    for c in range(2):
        for i in range(8):
            src = 8 + 4 * c + i // 2
            if i & 1:
                k.e("v_and_b32 v64, 0xffff0000, %s" % v(src))
            else:
                k.e("v_lshlrev_b32 v64, 16, %s" % v(src))
            k.e("v_sub_f32 v64, v64, %s" % v(48 + i))
            k.e("v_cvt_pk_bf16_f32 v64, v64, v64")
            k.nop(1)
            k.e("v_lshlrev_b32 v64, 16, v64")
            k.e("v_mul_f32 %s, v64, %s" % (v(66 + i), v(56 + i)))
        for j in range(4):
            k.e("v_cvt_pk_bf16_f32 %s, %s, %s" % (v(74 + j), v(66 + 7 - 2 * j), v(66 + 6 - 2 * j)))
        k.e("v_lshlrev_b32 v64, 4, v0")
        k.e("v_sub_u32 v64, %d, v64" % (c * CV_CH + CV_U + 4080))
        k.e("ds_write_b128 v64, v[74:77]")
    for j in range(4):
        k.e("v_mov_b32 %s, 0" % v(74 + j))
    k.e("v_lshlrev_b32 v64, 4, v0")
    k.e("v_cmp_gt_u32 vcc, 30, v0")
    k.e("s_and_saveexec_b64 s[48:49], vcc")
    k.e("ds_write_b128 v64, v[74:77] offset:%d" % (CV_U + 4096))
    k.e("ds_write_b128 v64, v[74:77] offset:%d" % (CV_CH + CV_U + 4096))
    k.e("s_mov_b64 exec, s[48:49]")
    k.e("s_waitcnt lgkmcnt(0)")
    k.e("s_and_b32 s40, s34, 1")
    k.e("s_lshl_b32 s40, s40, 4")
    k.e("s_lshr_b32 s39, s39, s40")
    k.e("s_lshl_b32 s39, s39, 16")
    k.e("s_add_u32 s41, s41, %d" % (CV_U + 2 * (2032 - 256 * 7)))
    k.e("v_lshlrev_b32 v64, 5, v5")
    k.e("v_sub_u32 v64, s41, v64")
    k.e("v_lshl_add_u32 v64, v6, 4, v64")
    k.e("s_mul_i32 s41, s31, %d" % CV_CH)
    k.e("v_lshrrev_b32 v65, 2, v5")
    k.e("s_movk_i32 s47, %d" % CV_KC)
    k.e("v_mul_lo_u32 v65, v65, s47")
    k.e("v_add_u32 v65, s41, v65")
    k.e("v_lshl_add_u32 v65, v6, 4, v65")
    k.e("v_and_b32 v66, 3, v5")
    k.e("v_lshl_add_u32 v65, v66, 3, v65")
    k.e("s_add_u32 s41, s41, %d" % (CV_U + 2 * (2044 - 256 * 7)))
    k.e("v_lshlrev_b32 v66, 5, v5")
    k.e("v_sub_u32 v66, s41, v66")
    k.e("v_lshlrev_b32 v67, 3, v6")
    k.e("v_sub_u32 v66, v66, v67")
    k.e("s_waitcnt vmcnt(0) lgkmcnt(0)")
    k.e("s_barrier")
    k.e("s_cmp_eq_u32 s32, 1")
    lh1 = name + "_h1"
    k.e("s_cbranch_scc1 " + lh1)
    BB = (68, 100); TB = (132, 164); ACC = 196
    for hh in range(2):
        G = list(range(0, 5)) if hh == 0 else list(range(5, 8))
        ng = max(G) + 1
        if hh == 1:
            k.label(lh1)
        for gi in range(len(G)):
            for r in range(4):
                k.e("v_mov_b32 %s, 0" % v(ACC + 4 * gi + r))
        def reads(m0):
            b = m0 & 1
            for gp in range(ng):
                k.e("ds_read_b128 %s, v64 offset:%d" % (vr(BB[b] + 4 * gp, 4), 2 * (256 * (7 - gp) + 32 * m0)))
            for e in range(ng):
                mu = m0 + 8 * e
                k.e("ds_read_b64_tr_b16 %s, v65 offset:%d" % (vr(TB[b] + 4 * e, 2), 64 * mu))
                k.e("ds_read_b64_tr_b16 %s, v65 offset:%d" % (vr(TB[b] + 4 * e + 2, 2), 64 * mu + 8))
        reads(0)
        for m0 in range(8):
            b = m0 & 1
            k.e("s_waitcnt lgkmcnt(0)")
            if m0 + 1 < 8:
                reads(m0 + 1)
            for e in range(ng):
                for gi, g in enumerate(G):
                    if e <= g:
                        k.e("v_mfma_f32_16x16x32_bf16 %s, %s, %s, %s" % (vr(ACC + 4 * gi, 4), vr(TB[b] + 4 * e, 4), vr(BB[b] + 4 * (g - e), 4), vr(ACC + 4 * gi, 4)))
        for gi, g in enumerate(G):
            k.e("ds_read_b64 %s, v66 offset:%d" % (vr(220 + 2 * gi, 2), 512 * (7 - g)))
        k.nop(8)
        k.e("s_waitcnt lgkmcnt(0)")
        for gi, g in enumerate(G):
            a = ACC + 4 * gi
            ub = 220 + 2 * gi
            xb = 32 + 2 * g
            T = 230
            k.e("v_cvt_pk_bf16_f32 %s, %s, %s" % (v(T), v(a), v(a + 1)))
            k.e("v_cvt_pk_bf16_f32 %s, %s, %s" % (v(T + 1), v(a + 2), v(a + 3)))
            k.e("v_and_b32 %s, 0xffff0000, %s" % (v(T + 2), v(ub + 1)))
            k.e("v_lshlrev_b32 %s, 16, %s" % (v(T + 3), v(ub + 1)))
            k.e("v_and_b32 %s, 0xffff0000, %s" % (v(T + 4), v(ub)))
            k.e("v_lshlrev_b32 %s, 16, %s" % (v(T + 5), v(ub)))
            for r in range(4):
                k.e("v_mul_f32 %s, s39, %s" % (v(T + 2 + r), v(T + 2 + r)))
            k.e("v_cvt_pk_bf16_f32 %s, %s, %s" % (v(T + 2), v(T + 2), v(T + 3)))
            k.e("v_cvt_pk_bf16_f32 %s, %s, %s" % (v(T + 3), v(T + 4), v(T + 5)))
            k.nop(1)
            for h in range(2):
                k.e("v_lshlrev_b32 %s, 16, %s" % (v(T + 4), v(T + h)))
                k.e("v_lshlrev_b32 %s, 16, %s" % (v(T + 5), v(T + 2 + h)))
                k.e("v_add_f32 %s, %s, %s" % (v(T + 4), v(T + 4), v(T + 5)))
                k.e("v_and_b32 %s, 0xffff0000, %s" % (v(T + 5), v(T + h)))
                k.e("v_and_b32 %s, 0xffff0000, %s" % (v(T + 6), v(T + 2 + h)))
                k.e("v_add_f32 %s, %s, %s" % (v(T + 5), v(T + 5), v(T + 6)))
                k.e("v_cvt_pk_bf16_f32 %s, %s, %s" % (v(T + 4), v(T + 4), v(T + 5)))
                k.nop(1)
                k.e("v_lshlrev_b32 %s, 16, %s" % (v(T + 5), v(T + 4)))
                k.e("v_lshlrev_b32 %s, 16, %s" % (v(T + 6), v(xb + h)))
                k.e("v_add_f32 %s, %s, %s" % (v(T + 5), v(T + 5), v(T + 6)))
                k.e("v_and_b32 %s, 0xffff0000, %s" % (v(T + 4), v(T + 4)))
                k.e("v_and_b32 %s, 0xffff0000, %s" % (v(T + 6), v(xb + h)))
                k.e("v_add_f32 %s, %s, %s" % (v(T + 4), v(T + 4), v(T + 6)))
                k.e("v_cvt_pk_bf16_f32 %s, %s, %s" % (v(T + 8 + h), v(T + 5), v(T + 4)))
            k.nop(1)
            k.e("buffer_store_dwordx2 %s, v7, s[20:23], s46 offen offset:%d" % (vr(T + 8, 2), 512 * g))
            k.nop(1)
        k.e("s_endpgm")
    k.label(ex)
    k.e("s_endpgm")
    return k


G1_ST = 49152
G1_LDS = 3 * G1_ST
G1_NWG = 224
def sigma_lane(k, dst, lane, t):
    pass

def gen_g1(name, xin):
    k = Kern(name)
    ex = name + "_exit"
    k.e("s_cmp_ge_u32 s2, %d" % G1_NWG)
    k.e("s_cbranch_scc1 " + ex)
    k.e("s_load_dwordx2 s[4:5], s[0:1], %d" % KA_WS)
    k.e("s_load_dwordx2 s[6:7], s[0:1], %d" % KA_WG)
    k.e("s_load_dwordx2 s[28:29], s[0:1], %d" % KA_WU)
    k.e("v_readfirstlane_b32 s30, v0")
    k.e("s_lshr_b32 s30, s30, 6")
    k.e("s_lshr_b32 s31, s30, 1")
    k.e("s_and_b32 s32, s30, 1")
    k.e("s_and_b32 s33, s2, 15")
    k.e("s_lshl_b32 s33, s33, 7")
    k.e("s_lshr_b32 s34, s2, 4")
    k.e("s_lshl_b32 s34, s34, 7")
    k.e("s_waitcnt lgkmcnt(0)")
    k.srd(8, 4, xin, D * L * 2)
    k.srd(12, 6, 0, D * F * 2)
    k.srd(16, 28, 0, D * F * 2)
    k.srd(20, 4, WS_HT, F * L * 2)
    k.srd(24, 4, WS_CW, 2 * F * 4)
    k.e("v_and_b32 v25, 63, v0")
    k.e("v_and_b32 v26, 15, v25")
    k.e("v_lshrrev_b32 v27, 4, v25")
    for i in range(4):
        k.e("v_lshlrev_b32 v0, 1, v27")
        k.e("v_xor_b32 v0, v0, v26")
        if i >> 1:
            k.e("v_xor_b32 v0, 8, v0")
        k.e("v_lshlrev_b32 v0, 4, v0")
        k.e("s_lshl_b32 s35, s30, 4")
        k.e("s_add_u32 s35, s35, %d" % (4 * i))
        k.e("v_add_u32 v24, s35, v27")
        k.e("v_lshl_add_u32 %s, v24, 12, v0" % v(9 + i))
        k.e("s_lshl_b32 s36, s33, 1")
        k.e("v_add_u32 %s, s36, %s" % (v(9 + i), v(9 + i)))
        k.e("s_movk_i32 s36, 3584")
        k.e("v_mul_lo_u32 v24, v24, s36")
        k.e("v_add_u32 %s, v24, v0" % v(13 + i))
        k.e("s_lshl_b32 s36, s34, 1")
        k.e("v_add_u32 %s, s36, %s" % (v(13 + i), v(13 + i)))
    def dma(st):
        b = (st % 3) * G1_ST
        k.e("s_mov_b32 s40, %d" % (st * 64 * 4096))
        k.e("s_mov_b32 s41, %d" % (st * 64 * 3584))
        k.e("s_lshl_b32 s42, s30, 12")
        for i in range(4):
            for part, (vo, srd, so) in enumerate(((9, "s[8:11]", "s40"), (13, "s[12:15]", "s41"), (13, "s[16:19]", "s41"))):
                k.e("s_add_u32 m0, s42, %d" % (b + part * 16384 + 1024 * i))
                k.nop(1)
                k.e("buffer_load_dwordx4 %s, %s, %s offen lds" % (v(vo + i), srd, so))
    dma(0); dma(1)
    k.e("v_lshrrev_b32 v0, 2, v26")
    k.e("v_and_b32 v24, 1, v27")
    k.e("v_lshl_or_b32 v24, v24, 2, v0")
    k.e("v_lshlrev_b32 v24, 1, v24")
    k.e("v_and_b32 v17, 3, v26")
    k.e("v_lshrrev_b32 v18, 1, v17")
    k.e("v_and_b32 v17, 1, v17")
    k.e("v_lshl_add_u32 v0, v27, 3, v0")
    k.e("v_lshlrev_b32 v0, 8, v0")
    k.e("v_lshl_add_u32 v0, v17, 3, v0")
    for t in range(4):
        for (dst, sw) in ((1 + t, "s31"), (5 + t, "s32")):
            k.e("s_lshl_b32 s35, %s, 3" % sw)
            k.e("s_add_u32 s35, s35, %d" % (2 * t))
            k.e("v_add_u32 v19, s35, v18")
            k.e("v_xor_b32 v19, v19, v24")
            k.e("v_lshl_add_u32 %s, v19, 4, v0" % v(dst))
    for t in range(4):
        k.e("v_add_u32 %s, 16384, %s" % (v(5 + t), v(5 + t)))
    for i in range(17, 25):
        k.e("v_mov_b32 %s, 0" % v(i))
    for i in range(128, 256):
        k.e("v_mov_b32 %s, 0" % v(i))
    FA = (28, 76); FB = (44, 92)
    def reads(ks, fb):
        for t in range(4):
            for h in range(2):
                k.e("ds_read_b64_tr_b16 %s, %s offset:%d" % (vr(FA[fb] + 4 * t + 2 * h, 2), v(1 + t), ks * 8192 + h * 1024))
        for u in range(2):
            for t in range(4):
                for h in range(2):
                    k.e("ds_read_b64_tr_b16 %s, %s offset:%d" % (vr(FB[fb] + 16 * u + 4 * t + 2 * h, 2), v(5 + t), u * 16384 + ks * 8192 + h * 1024))
    def comp(fb):
        for t in range(4):
            for j in range(8):
                k.e("v_mfma_f32_16x16x32_bf16 %s, %s, %s, %s" % (vr(128 + 32 * t + 4 * j, 4), vr(FA[fb] + 4 * t, 4), vr(FB[fb] + 4 * j, 4), vr(128 + 32 * t + 4 * j, 4)))
            for r in range(4):
                k.e("v_dot2_f32_bf16 %s, %s, s43, %s" % (v(17 + t), v(FA[fb] + 4 * t + r), v(17 + t)))
                k.e("v_dot2_f32_bf16 %s, %s, %s, %s" % (v(21 + t), v(FA[fb] + 4 * t + r), v(FA[fb] + 4 * t + r), v(21 + t)))
    k.e("s_mov_b32 s43, 0x3f803f80")
    k.e("s_mov_b32 s44, %s" % flit(0.044715))
    for st in range(8):
        k.e("s_waitcnt vmcnt(%d)" % (12 if st < 7 else 0))
        k.e("s_barrier")
        if st + 2 < 8:
            dma(st + 2)
        reads(0, 0)
        k.e("s_waitcnt lgkmcnt(0)")
        reads(1, 1)
        comp(0)
        k.e("s_waitcnt lgkmcnt(0)")
        comp(1)
        d = G1_ST if (st % 3) < 2 else -2 * G1_ST
        for i in range(1, 9):
            k.e("v_add_u32 %s, %d, %s" % (v(i), d, v(i)))
    k.e("s_barrier")
    k.e("s_lshl_b32 s35, s30, 12")
    k.e("v_lshlrev_b32 v0, 5, v26")
    k.e("v_lshl_add_u32 v0, v27, 3, v0")
    k.e("v_add_u32 v0, s35, v0")
    for t in range(4):
        k.e("v_mov_b32 v2, %s" % v(17 + t))
        k.e("v_mov_b32 v3, %s" % v(21 + t))
        k.e("ds_write_b64 v0, v[2:3] offset:%d" % (512 * t))
    k.e("v_lshl_add_u32 v1, v25, 5, s35")
    k.e("s_waitcnt lgkmcnt(0)")
    k.e("ds_read_b128 v[2:5], v1")
    k.e("ds_read_b128 v[6:9], v1 offset:16")
    k.e("s_waitcnt lgkmcnt(0)")
    k.e("v_add_f32 v2, v2, v4"); k.e("v_add_f32 v6, v6, v8"); k.e("v_add_f32 v2, v2, v6")
    k.e("v_add_f32 v3, v3, v5"); k.e("v_add_f32 v7, v7, v9"); k.e("v_add_f32 v3, v3, v7")
    ln_params(k, 2, 3, 4, 5, 6)
    k.e("v_lshl_add_u32 v1, v25, 3, s35")
    k.e("ds_write_b64 v1, v[4:5] offset:2048")
    k.e("s_lshl_b32 s36, s32, 6")
    k.e("s_add_u32 s36, s36, s34")
    k.e("v_add_u32 v2, s36, v26")
    k.e("v_lshlrev_b32 v2, 2, v2")
    for u in range(2):
        for ft in range(4):
            k.e("s_movk_i32 s39, %d" % (u * F * 4))
            k.e("buffer_load_dword %s, v2, s[24:27], s39 offen offset:%d" % (v(28 + 4 * u + ft), 64 * ft))
    k.e("v_lshl_add_u32 v1, v27, 5, s35")
    k.e("s_waitcnt lgkmcnt(0)")
    for t in range(4):
        for r in range(4):
            k.e("ds_read_b64 %s, v1 offset:%d" % (vr(40 + 8 * t + 2 * r, 2), 2048 + 128 * t + 8 * r))
    k.e("v_lshlrev_b32 v3, 12, v2")
    k.e("v_lshrrev_b32 v3, 2, v3")
    k.e("v_lshl_add_u32 v3, v27, 3, v3")
    k.e("s_lshl_b32 s37, s31, 6")
    k.e("s_add_u32 s37, s37, s33")
    k.e("s_lshl_b32 s37, s37, 1")
    k.e("s_waitcnt vmcnt(0) lgkmcnt(0)")
    C1 = flit(-2.0 * 0.7978845608028654 * 1.4426950408889634)
    for t in range(4):
        for ft in range(4):
            T = 80
            for u in range(2):
                for r in range(4):
                    a = 128 + 32 * t + 16 * u + 4 * ft + r
                    mm, rs = 40 + 8 * t + 2 * r, 41 + 8 * t + 2 * r
                    k.e("v_fma_f32 %s, -%s, %s, %s" % (v(T + 4 * u + r), v(mm), v(28 + 4 * u + ft), v(a)))
                    k.e("v_mul_f32 %s, %s, %s" % (v(T + 4 * u + r), v(T + 4 * u + r), v(rs)))
            for u in range(2):
                for r in range(4):
                    k.e("v_cvt_pk_bf16_f32 %s, %s, %s" % (v(T + 4 * u + r), v(T + 4 * u + r), v(T + 4 * u + r)))
            k.nop(1)
            for i in range(8):
                k.e("v_lshlrev_b32 %s, 16, %s" % (v(T + i), v(T + i)))
            for r in range(4):
                x = T + r; t1 = T + 8 + r
                k.e("v_mul_f32 %s, %s, %s" % (v(t1), v(x), v(x)))
                k.e("v_fma_f32 %s, %s, s44, 1.0" % (v(t1), v(t1)))
                k.e("v_mul_f32 %s, %s, %s" % (v(t1), v(t1), v(x)))
                k.e("v_mul_f32 %s, %s, %s" % (v(t1), C1, v(t1)))
                k.e("v_exp_f32 %s, %s" % (v(t1), v(t1)))
                k.nop(1)
                k.e("v_add_f32 %s, 1.0, %s" % (v(t1), v(t1)))
                k.e("v_rcp_f32 %s, %s" % (v(t1), v(t1)))
                k.nop(1)
                k.e("v_mul_f32 %s, %s, %s" % (v(t1), v(t1), v(x)))
                k.e("v_cvt_pk_bf16_f32 %s, %s, %s" % (v(t1), v(t1), v(t1)))
                k.nop(1)
                k.e("v_lshlrev_b32 %s, 16, %s" % (v(t1), v(t1)))
                k.e("v_mul_f32 %s, %s, %s" % (v(t1), v(t1), v(T + 4 + r)))
            k.e("v_cvt_pk_bf16_f32 v96, v88, v89")
            k.e("v_cvt_pk_bf16_f32 v97, v90, v91")
            k.e("s_add_u32 s38, s37, %d" % (65536 * ft))
            k.nop(1)
            k.e("buffer_store_dwordx2 v[96:97], v3, s[20:23], s38 offen offset:%d" % (32 * t))
            k.nop(1)
    k.label(ex)
    k.e("s_endpgm")
    return k


G2_LDS = 65536
def gen_g2(name, xin, xout, final):
    k = Kern(name)
    ex = name + "_exit"
    k.e("s_cmp_ge_u32 s2, 256")
    k.e("s_cbranch_scc1 " + ex)
    k.e("s_load_dwordx2 s[4:5], s[0:1], %d" % KA_WS)
    k.e("s_load_dwordx2 s[6:7], s[0:1], %d" % KA_WD)
    k.e("s_load_dwordx2 s[28:29], s[0:1], %d" % KA_OUT)
    k.e("v_readfirstlane_b32 s30, v0")
    k.e("s_lshr_b32 s30, s30, 6")
    k.e("s_and_b32 s33, s2, 31")
    k.e("s_lshl_b32 s33, s33, 6")
    k.e("s_lshr_b32 s34, s2, 5")
    k.e("s_lshl_b32 s34, s34, 6")
    k.e("s_waitcnt lgkmcnt(0)")
    k.srd(8, 4, WS_HT, F * L * 2)
    k.srd(12, 6, 0, F * D * 2)
    k.srd(16, 4, xin, D * L * 2)
    if final: k.srd(20, 28, 0, D * L * 2)
    else: k.srd(20, 4, xout, D * L * 2)
    k.srd(24, 4, WS_ST2, L * 8)
    k.e("v_and_b32 v25, 63, v0")
    k.e("v_and_b32 v26, 15, v25")
    k.e("v_lshrrev_b32 v27, 4, v25")
    for i in range(4):
        k.e("v_and_b32 v0, 7, v25")
        k.e("v_and_b32 v24, 1, v27")
        k.e("v_lshlrev_b32 v24, 1, v24")
        k.e("v_xor_b32 v0, v0, v24")
        if i & 1: k.e("v_xor_b32 v0, 4, v0")
        k.e("v_lshlrev_b32 v0, 4, v0")
        k.e("s_lshl_b32 s35, s30, 5")
        k.e("s_add_u32 s35, s35, %d" % (8 * i))
        k.e("v_lshrrev_b32 v24, 3, v25")
        k.e("v_add_u32 v24, s35, v24")
        k.e("v_lshl_add_u32 %s, v24, 12, v0" % v(9 + i))
        k.e("s_lshl_b32 s36, s33, 1")
        k.e("v_add_u32 %s, s36, %s" % (v(9 + i), v(9 + i)))
        k.e("v_lshl_add_u32 %s, v24, 10, v0" % v(13 + i))
        k.e("s_lshl_b32 s36, s34, 1")
        k.e("v_add_u32 %s, s36, %s" % (v(13 + i), v(13 + i)))
    k.e("s_lshl_b32 s42, s30, 14")
    def dma(st):
        b = (st % 2) * 8192
        k.e("s_mov_b32 s40, %d" % (st * 128 * 4096))
        k.e("s_mov_b32 s41, %d" % (st * 128 * 1024))
        for i in range(4):
            for part, (vo, srd, so) in enumerate(((9, "s[8:11]", "s40"), (13, "s[12:15]", "s41"))):
                k.e("s_add_u32 m0, s42, %d" % (b + part * 4096 + 1024 * i))
                k.nop(1)
                k.e("buffer_load_dwordx4 %s, %s, %s offen lds" % (v(vo + i), srd, so))
    dma(0)
    k.e("v_lshrrev_b32 v0, 2, v26")
    k.e("v_lshrrev_b32 v24, 1, v0")
    k.e("v_and_b32 v17, 1, v27")
    k.e("v_lshl_or_b32 v24, v17, 1, v24")
    k.e("v_lshlrev_b32 v24, 1, v24")
    k.e("v_and_b32 v17, 3, v26")
    k.e("v_lshrrev_b32 v18, 1, v17")
    k.e("v_and_b32 v17, 1, v17")
    k.e("v_lshl_add_u32 v0, v27, 3, v0")
    k.e("v_lshlrev_b32 v0, 7, v0")
    k.e("v_lshl_add_u32 v0, v17, 3, v0")
    k.e("v_add_u32 v0, s42, v0")
    for t in range(4):
        k.e("v_add_u32 v19, %d, v18" % (2 * t))
        k.e("v_xor_b32 v19, v19, v24")
        k.e("v_lshl_add_u32 %s, v19, 4, v0" % v(1 + t))
    for i in range(64, 128):
        k.e("v_mov_b32 %s, 0" % v(i))
    for st in range(14):
        b = (st % 2) * 8192
        k.e("s_waitcnt vmcnt(0)")
        if st + 1 < 14: dma(st + 1)
        for u in range(2):
            for t in range(4):
                for h in range(2):
                    k.e("ds_read_b64_tr_b16 %s, %s offset:%d" % (vr(28 + 16 * u + 4 * t + 2 * h, 2), v(1 + t), b + u * 4096 + h * 512))
        k.e("s_waitcnt lgkmcnt(0)")
        for t in range(4):
            for j in range(4):
                k.e("v_mfma_f32_16x16x32_bf16 %s, %s, %s, %s" % (vr(64 + 16 * t + 4 * j, 4), vr(28 + 4 * t, 4), vr(44 + 4 * j, 4), vr(64 + 16 * t + 4 * j, 4)))
    k.e("s_waitcnt lgkmcnt(0)")
    k.nop(8)
    k.e("v_lshl_add_u32 v1, v25, 4, s42")
    for tl in range(16):
        k.e("ds_write_b128 v1, %s offset:%d" % (vr(64 + 4 * tl, 4), 1024 * tl))
    k.e("v_lshlrev_b32 v2, 12, v26")
    k.e("v_lshl_add_u32 v2, v27, 3, v2")
    k.e("s_lshl_b32 s37, s34, 12")
    k.e("s_lshl_b32 s35, s30, 4")
    k.e("s_add_u32 s35, s35, s33")
    k.e("s_lshl_b32 s35, s35, 1")
    k.e("s_add_u32 s37, s37, s35")
    for j in range(4):
        k.e("s_add_u32 s%d, s37, %d" % (44 + j, 65536 * j))
        k.e("buffer_load_dwordx2 %s, v2, s[16:19], s%d offen" % (vr(28 + 2 * j, 2), 44 + j))
    k.e("s_waitcnt lgkmcnt(0)")
    k.e("s_barrier")
    k.e("s_lshl_b32 s35, s30, 12")
    k.e("v_lshl_add_u32 v1, v25, 4, s35")
    for w in range(4):
        for j in range(4):
            k.e("ds_read_b128 %s, v1 offset:%d" % (vr(64 + 16 * w + 4 * j, 4), 16384 * w + 1024 * j))
    k.e("s_waitcnt vmcnt(0) lgkmcnt(0)")
    for w in range(1, 4):
        for i in range(16):
            k.e("v_add_f32 %s, %s, %s" % (v(64 + i), v(64 + i), v(64 + 16 * w + i)))
    for r in range(8):
        k.e("v_mov_b32 %s, 0" % v(40 + r))
    for j in range(4):
        a = 64 + 4 * j
        k.e("v_cvt_pk_bf16_f32 v50, %s, %s" % (v(a), v(a + 1)))
        k.e("v_cvt_pk_bf16_f32 v51, %s, %s" % (v(a + 2), v(a + 3)))
        k.nop(1)
        for h in range(2):
            k.e("v_lshlrev_b32 v52, 16, %s" % v(50 + h))
            k.e("v_lshlrev_b32 v53, 16, %s" % v(28 + 2 * j + h))
            k.e("v_add_f32 v52, v52, v53")
            k.e("v_and_b32 v53, 0xffff0000, %s" % v(50 + h))
            k.e("v_and_b32 v54, 0xffff0000, %s" % v(28 + 2 * j + h))
            k.e("v_add_f32 v53, v53, v54")
            k.e("v_cvt_pk_bf16_f32 %s, v52, v53" % v(56 + h))
            k.nop(1)
            if not final:
                k.e("v_lshlrev_b32 v52, 16, %s" % v(56 + h))
                k.e("v_and_b32 v53, 0xffff0000, %s" % v(56 + h))
                k.e("v_add_f32 %s, %s, v52" % (v(40 + 2 * h), v(40 + 2 * h)))
                k.e("v_fma_f32 %s, v52, v52, %s" % (v(44 + 2 * h), v(44 + 2 * h)))
                k.e("v_add_f32 %s, %s, v53" % (v(41 + 2 * h), v(41 + 2 * h)))
                k.e("v_fma_f32 %s, v53, v53, %s" % (v(45 + 2 * h), v(45 + 2 * h)))
        if not final:
            k.e("buffer_store_dwordx2 v[56:57], v2, s[20:23], s%d offen" % (44 + j))
        else:
            k.e("v_lshlrev_b32 v3, 12, v27")
            k.e("v_lshl_add_u32 v3, v26, 1, v3")
            k.e("s_lshl_b32 s35, s30, 4")
            k.e("s_add_u32 s35, s35, s33")
            k.e("s_lshl_b32 s35, s35, 10")
            k.e("s_lshl_b32 s36, s34, 1")
            k.e("s_add_u32 s35, s35, s36")
            k.e("s_add_u32 s35, s35, %d" % (32 * j))
            k.nop(4)
            for r in range(4):
                op = "buffer_store_short_d16_hi" if r & 1 else "buffer_store_short"
                k.e("%s %s, v3, s[20:23], s35 offen offset:%d" % (op, v(56 + r // 2), 1024 * r))
        k.nop(1)
    if not final:
        for r in range(8):
            for sh in (1, 2, 4, 8):
                k.e("v_add_f32_dpp %s, %s, %s row_shr:%d row_mask:0xf bank_mask:0xf bound_ctrl:0" % (v(40 + r), v(40 + r), v(40 + r), sh))
                k.nop(2)
        k.e("s_lshl_b32 s35, s30, 4")
        k.e("s_add_u32 s35, s35, s33")
        k.e("s_lshl_b32 s35, s35, 3")
        k.e("v_lshlrev_b32 v3, 5, v27")
        k.e("v_cmp_eq_u32 vcc, 15, v26")
        k.e("s_and_saveexec_b64 s[48:49], vcc")
        for r in range(4):
            k.e("buffer_atomic_add_f32 %s, v3, s[24:27], s35 offen offset:%d" % (v(40 + r), 8 * r))
            k.e("buffer_atomic_add_f32 %s, v3, s[24:27], s35 offen offset:%d" % (v(44 + r), 8 * r + 4))
    k.label(ex)
    k.e("s_endpgm")
    return k

def build(kernels):
    out = []
    for ll, _, _, _ in kernels:
        if ll: out.append("; @launch " + ll)
    out.append('.amdgcn_target "amdgcn-amd-amdhsa--gfx950"')
    out.append(".text")
    seen = set()
    for _, name, kk, _ in kernels:
        if name in seen: continue
        seen.add(name)
        out.append(kernel_header(name) + kk.text())
    out.append('.section .rodata,"a"')
    seen = set()
    for _, name, kk, vg in kernels:
        if name in seen: continue
        seen.add(name)
        out.append(kernel_desc(name, vg))
    return "\n".join(out)

if __name__ == "__main__":
    kernels = []
    prep = gen_prep()
    kernels.append(("kernel=prep_kernel grid=(%d,1,1) block=(256,1,1) lds=%d" % (PREP_NWG, PREP_LDS), "prep_kernel", prep, 128))
    kernels.append(("kernel=conv1_kernel grid=(256,1,1) block=(256,1,1) lds=%d" % CONV_LDS, "conv1_kernel", gen_conv("conv1", WS_XT0, WS_ST0, WS_XT1), 256))
    kernels.append(("kernel=g1a_kernel grid=(%d,1,1) block=(256,1,1) lds=%d" % (G1_NWG, G1_LDS), "g1a_kernel", gen_g1("g1a", WS_XT1), 256))
    kernels.append(("kernel=g2a_kernel grid=(256,1,1) block=(256,1,1) lds=%d" % G2_LDS, "g2a_kernel", gen_g2("g2a", WS_XT1, WS_XT2, False), 128))
    kernels.append(("kernel=conv2_kernel grid=(256,1,1) block=(256,1,1) lds=%d" % CONV_LDS, "conv2_kernel", gen_conv("conv2", WS_XT2, WS_ST2, WS_XT3), 256))
    kernels.append(("kernel=g1b_kernel grid=(%d,1,1) block=(256,1,1) lds=%d" % (G1_NWG, G1_LDS), "g1b_kernel", gen_g1("g1b", WS_XT3), 256))
    kernels.append(("kernel=g2b_kernel grid=(256,1,1) block=(256,1,1) lds=%d" % G2_LDS, "g2b_kernel", gen_g2("g2b", WS_XT3, 0, True), 128))
    txt = build(kernels)
    dst = sys.argv[1] if len(sys.argv) > 1 else "cdna_kernels/%s.s" % NAME
    open(dst, "w").write(txt)
    print("wrote", dst, len(txt))
```
